```python
import torch

def _softmax(x, axis=-1):
    return torch.softmax(x, dim=axis)
def _gelu(x):
    return torch.nn.functional.gelu(x, approximate="tanh")
def _silu(x):
    return torch.nn.functional.silu(x)
def _sigmoid(x):
    return torch.sigmoid(x)
def _layernorm(x, axis=-1, eps=1e-5):
    m = x.mean(dim=axis, keepdim=True)
    v = x.var(dim=axis, keepdim=True, unbiased=False)
    return (x - m) / torch.sqrt(v + eps)
def _scatter_add(tgt, idx, src, axis=0):
    return tgt.clone().index_add_(axis, idx, src)
def _segment_sum(src, seg, n):
    out = torch.zeros((n,) + src.shape[1:], dtype=src.dtype)
    return out.index_add_(0, seg, src)
def _pad(x, pw):
    flat = tuple(v for pair in reversed(pw) for v in pair)
    return torch.nn.functional.pad(x, flat)

kernel_name = 'recurrent_scan__sliding_block_cached__glu_gated_geglu__prompt'

def setup_inputs():

    _w = (lambda a: (lambda t: t.to(torch.bfloat16) if t.is_floating_point() else t)(torch.as_tensor(a)))
    def _A_setup():
        B, Sq, D = 1, 2048, 448
        Hq, Hkv, Sk, Dh = 16, 8, 2048, 256
        assert Hq % Hkv == 0, (Hq, Hkv)
        return {
            "x": _w((lambda *s: torch.randn(*s, dtype=torch.bfloat16) * 0.2)(B, Sq, D)),
            "k_cache": _w((lambda *s: torch.randn(*s, dtype=torch.bfloat16) * 0.8)(B, Hkv, Sk, Dh)),
            "v_cache": _w((lambda *s: torch.randn(*s, dtype=torch.bfloat16) * 1.6)(B, Hkv, Sk, Dh)),
            "wq": _w((lambda *s: torch.randn(*s, dtype=torch.bfloat16) * 0.8)(D, Hq * Dh) * (D ** -0.5)),
            "wo": _w((lambda *s: torch.randn(*s, dtype=torch.bfloat16) * 1.6)(Hq * Dh, D) * ((Hq * Dh) ** -0.5)),
        }
    _A_in = _A_setup()

    def _B_setup():
        B, S, Dm, Df = 1, 2048, 448, 1792
        return {
            "x": _w((lambda *s: torch.randn(*s, dtype=torch.bfloat16) * 0.2)(B, S, Dm)),
            "w_gate": _w((lambda *s: torch.randn(*s, dtype=torch.bfloat16) * 0.8)(Dm, Df) * (Dm ** -0.5)),
            "w_up": _w((lambda *s: torch.randn(*s, dtype=torch.bfloat16) * 0.8)(Dm, Df) * (Dm ** -0.5)),
            "w_down": _w((lambda *s: torch.randn(*s, dtype=torch.bfloat16) * 0.8)(Df, Dm) * (Df ** -0.5)),
        }
    _B_in = _B_setup()

    return {
        "A_x": _A_in["x"],
        "A_k_cache": _A_in["k_cache"],
        "A_v_cache": _A_in["v_cache"],
        "A_wq": _A_in["wq"],
        "A_wo": _A_in["wo"],
        "B_x": _B_in["x"],
        "B_w_gate": _B_in["w_gate"],
        "B_w_up": _B_in["w_up"],
        "B_w_down": _B_in["w_down"],
    }

def reference(A_x, A_k_cache, A_v_cache, A_wq, A_wo, B_x, B_w_gate, B_w_up, B_w_down):
    def _A_ref(x, k_cache, v_cache, wq, wo):
        B, Sq, D = x.shape
        Hq, Dh = 16, 256
        Hkv, Sk = k_cache.shape[1], k_cache.shape[2]
        W = min(4096, max(256, Sk // 4))
        rep = Hq // Hkv
        q = (lambda x, *d: x.permute(*d))((x @ wq).reshape(B, Sq, Hq, Dh), 0, 2, 1, 3)
        k = (lambda x, n, axis: torch.repeat_interleave(x, n, dim=axis))(k_cache[:, :, Sk - W:, :], rep, axis=1)
        v = (lambda x, n, axis: torch.repeat_interleave(x, n, dim=axis))(v_cache[:, :, Sk - W:, :], rep, axis=1)
        scores = torch.einsum("bhqd,bhkd->bhqk", q, k) * (Dh ** -0.5)
        p = _softmax(scores, axis=-1)
        o = torch.einsum("bhqk,bhkd->bhqd", p, v)
        return (lambda x, *d: x.permute(*d))(o, 0, 2, 1, 3).reshape(B, Sq, Hq * Dh) @ wo

    def _B_ref(x, w_gate, w_up, w_down):
        g = torch.einsum("bsd,df->bsf", x, w_gate)
        u = torch.einsum("bsd,df->bsf", x, w_up)
        h = _gelu(g) * u
        return torch.einsum("bsf,fd->bsd", h, w_down)

    x = A_x
    xn = _layernorm(x, axis=-1)
    s = _A_ref(xn, A_k_cache, A_v_cache, A_wq, A_wo)
    g = _silu(_B_ref(xn, B_w_gate, B_w_up, B_w_down))
    return x + s * g
```

```python
import sys, math
from ir import *

KNAME = "recurrent_scan__sliding_block_cached__glu_gated_geglu__prompt_kernel"

D = 448; NKS = 14
XROW = 896
WQROW = 8192; WGROW = 3584
KVROW = 512
SZ_X = 2048*896; SZ_KV = 8*2048*512; SZ_WQ = 448*8192; SZ_WO = 4096*896; SZ_WG = 448*3584; SZ_WD = 1792*896
WS_PART = 32*7*8*2*8192
LOG2E = 1.4426950408889634

X0 = 0
Y0 = 65536
FS = 28736
FSLOT = [Y0, Y0 + FS, Y0 + 2*FS]
HB = Y0
QS = [98304 + 16384*q for q in range(4)]
WDS = [Y0, Y0 + 28672, Y0 + 2*28672]
LDS_BYTES = 163840

S_X, S_K, S_V, S_WQ, S_WO, S_WF, S_WD, S_WS, S_OUT = 8, 12, 16, 20, 24, 28, 32, 36, 40
sW, sJ, sRB = 44, 45, 46
sW1024x7 = 47
sW4096 = 48
sW7168 = 49
sWdG = 50
sWoG = 51
sSL = 52
sWSO = 59
sKWIN = 66
sT = [70, 71, 72, 73, 74, 75, 76, 77]
sTMP = 80

ACCF = 0
ACCQ = [112, 0]
GT = 176
vFR = [204, 205]
vFD = 206
vQR = 213
vQD = 217
vHW = 221
vQW = 222
vKD = 223
vVD = 227
vKR = 231
vLN = 235
vVR = 236
vWD = 244
vWR = 248
vFRG = 251
vFRG1 = 252
vPS = 253
vQF = 254
vL = 255
OACC = 0
SBUF = [128, 144]
PBUF = [160, 168]
LACC = 176
CINI = 184
MX = 192
ONES = 196
FT = 198
TMPF = 200
ACCD = [128, 144]
ACCS = [160, 176]
PK = 192
RINGV = 204
OFV = 0
A_XN = 0
A_RINGFQ = 224
A_H = 0
A_Q = 112
A_RINGFL = 176
A_OF = 112

class G:
    def __init__(self, opts):
        self.p = Prog()
        self.o = opts
        self.pre = []
        self.tiles = []
        self.st = 0
        self.m0val = None
    def add(self, txt, kind, defs=(), uses=(), after=(), complete=(), srcC=(), wide=False, prio=0, order=False, tag=None):
        i = Ins(txt, kind, defs, uses, srcC, wide, tag)
        i.prio = prio
        if order: i.nb = "order"
        return self.p.add(i, after, complete)
    def valu(self, op, dst, *src, kind="valu", extra="", prio=0, after=()):
        def tx(x):
            if isinstance(x, tuple): return rt(*x)
            return str(x)
        def regs(x):
            if isinstance(x, tuple): return R(*x)
            x = str(x)
            if x[0] == "-": x = x[1:]
            if x and x[0] in "vas" and x[1:].isdigit(): return [x]
            if x in ("vcc", "m0", "exec"): return [x]
            return []
        defs = regs(dst); uses = []
        for s in src: uses += regs(s)
        if op.startswith("v_fmac") or op.startswith("v_permlane") or op.startswith("v_dot2c"):
            uses += defs
        if op.startswith("v_permlane"):
            defs = defs + regs(src[0]); kind = "perm"
        txt = "%s %s" % (op, ", ".join([tx(dst)] + [tx(s) for s in src])) + ((" " + extra) if extra else "")
        return self.add(txt, kind, defs, uses, prio=prio, after=after)
    def trans(self, op, dst, src, prio=0): return self.valu(op, dst, src, kind="trans", prio=prio)
    def salu(self, op, dst, *src, after=(), scc=False):
        defs = [dst] if isinstance(dst, str) else R(*dst)
        uses = []
        for s in src:
            if isinstance(s, tuple): uses += R(*s)
            elif isinstance(s, str) and (s[0] == "s" and s[1:].isdigit() or s == "m0"): uses.append(s)
        tx = lambda x: rt(*x) if isinstance(x, tuple) else str(x)
        return self.add("%s %s" % (op, ", ".join([tx(dst)] + [tx(s) for s in src])), "salu", defs, uses, after=after)
    def mfma(self, d, a, b, c):
        dr = R(d[0], d[1], 4); ar = R(a[0], a[1], 4); br = R(b[0], b[1], 4)
        if c == 0: cr = []; ct = "0"
        else: cr = R(c[0], c[1], 4); ct = rt(c[0], c[1], 4)
        return self.add("v_mfma_f32_16x16x32_bf16 %s, %s, %s, %s" % (rt(d[0], d[1], 4), rt(a[0], a[1], 4), rt(b[0], b[1], 4), ct),
                        "mfma", dr, ar + br + cr, srcC=cr)
    def dsr128(self, dst, addr, off, tile=None):
        assert 0 <= off < 65536, off
        i = self.add("ds_read_b128 %s, v%d offset:%d" % (rt(dst[0], dst[1], 4), addr, off), "dsr", R(dst[0], dst[1], 4), ["v%d" % addr],
                     **self._rd(tile))
        if tile: tile.readers.append(i)
        return i
    def dsrtr(self, dst, addr, off, tile=None):
        assert 0 <= off < 65536, off
        i = self.add("ds_read_b64_tr_b16 %s, v%d offset:%d" % (rt(dst[0], dst[1], 2), addr, off), "dsr", R(dst[0], dst[1], 2), ["v%d" % addr],
                     **self._rd(tile))
        if tile: tile.readers.append(i)
        return i
    def _rd(self, tile):
        if tile is None: return {}
        if tile.private:
            return dict(complete=list(tile.writers))
        assert tile.pub is not None, ("reading unpublished tile", tile.name)
        return dict(after=[tile.pub])
    def dsw(self, addr, src, n, off, tile):
        assert 0 <= off < 65536, off
        op = {2: "ds_write_b64", 4: "ds_write_b128"}[n]
        i = self.add("%s v%d, %s offset:%d" % (op, addr, rt(src[0], src[1], n), off), "dsw", [], ["v%d" % addr] + R(src[0], src[1], n),
                     after=tile.wdeps, wide=(n == 4))
        tile.writers.append(i)
        return i
    def stemp(self):
        s = sT[self.st % len(sT)]; self.st += 1; return s
    def setm0(self, sbase, imm):
        if sbase is None: return self.salu("s_mov_b32", "m0", imm)
        return self.salu("s_add_u32", "m0", "s%d" % sbase, imm)
    def dma(self, srd, voff, soff, imm, tile):
        assert 0 <= imm < 4096
        so = "s%d" % soff if soff is not None else "0"
        uses = ["v%d" % voff, "m0"] + R("s", srd, 4) + ([so] if soff is not None else [])
        i = self.add("buffer_load_dwordx4 v%d, s[%d:%d], %s offen offset:%d lds" % (voff, srd, srd + 3, so, imm), "dma", [], uses,
                     after=tile.wdeps, order=True)
        tile.writers.append(i)
        return i
    def tile(self, name, ranges, private=False, extra_wdeps=()):
        t = Tile(name, ranges, private)
        deps = list(extra_wdeps)
        for o in self.tiles:
            if o.dead: continue
            if any(a < c + d and c < a + b for (a, b) in ranges for (c, d) in o.ranges):
                if o.freed is None:
                    raise RuntimeError("LDS conflict: %s overlaps live tile %s" % (name, o.name))
                deps += o.freed
        t.wdeps = deps
        self.tiles.append(t)
        return t
    def free_private(self, tile, consumers):
        tile.freed = list(consumers)
    def barrier(self, publish=(), free=(), prio=0):
        comp = []
        for t in publish: comp += t.writers
        for t in free: comp += t.readers
        i = self.add("s_barrier", "bar", [], [], complete=comp, prio=prio)
        for t in publish: t.pub = i
        for t in free:
            assert t.freed is None, t.name
            t.freed = [i]
        return i

class Tile:
    def __init__(self, name, ranges, private):
        self.name = name; self.ranges = ranges; self.private = private
        self.writers = []; self.readers = []; self.pub = None; self.freed = None; self.wdeps = []; self.dead = False

def f32hex(x):
    import struct
    return "0x%08x" % struct.unpack("<I", struct.pack("<f", x))[0]
```

```python
import heapq

def R(kind, base, n=1):
    return ["%s%d" % (kind, base + i) for i in range(n)]
def rt(kind, base, n=1):
    return "%s%d" % (kind, base) if n == 1 else "%s[%d:%d]" % (kind, base, base + n - 1)

class Ins:
    __slots__ = ("txt", "kind", "defs", "uses", "idx", "preds", "succs", "dl", "dur", "cdeps", "time",
                 "npred", "ready", "srcC", "wide", "pin", "prio", "tag", "nb")
    def __init__(self, txt, kind, defs=(), uses=(), srcC=(), wide=False, tag=None):
        self.txt = txt; self.kind = kind
        self.defs = list(defs); self.uses = list(uses)
        self.srcC = list(srcC)
        self.wide = wide
        self.preds = {}
        self.succs = []
        self.cdeps = []
        self.dl = None; self.time = None; self.prio = 0; self.tag = tag; self.nb = None
    def __repr__(self): return "<%s %s>" % (self.kind, self.txt)

VALU = ("valu", "trans", "perm")
LGKM = ("dsr", "dsw")
VM = ("dma", "vld", "vst")

class Lat:
    dsr = 132
    dsw = 60
    vld = 1500
    dma = 1100
    vst = 600
    mfma_valu = 48
    mfma_ab = 48
    valu_mfma = 12
    trans = 12

def dur(i):
    if i.kind == "mfma": return 8
    if i.kind == "trans": return 8
    if i.kind == "bar": return 8
    return 4

class Prog:
    def __init__(self):
        self.ins = []
        self.lastdef = {}
        self.readers = {}
    def add(self, i, after=(), complete=()):
        i.idx = len(self.ins)
        for r in i.uses:
            d = self.lastdef.get(r)
            if d is not None: self._edge(d, i, self._raw(d, i, r))
        for r in i.defs:
            d = self.lastdef.get(r)
            if d is not None and d is not i:
                if d.kind == "mfma" and i.kind == "mfma" and r in i.srcC:
                    pass
                else:
                    self._edge(d, i, self._waw(d, i))
            for u in self.readers.get(r, ()):
                if u is not i: self._edge(u, i, self._war(u, i, r))
        for r in i.uses:
            self.readers.setdefault(r, []).append(i)
        for r in i.defs:
            self.lastdef[r] = i
            self.readers[r] = [i] if r in i.uses else []
        for a in after: self._edge(a, i, 4)
        for c in complete:
            lat = {"dsr": Lat.dsr, "dsw": Lat.dsw, "dma": Lat.dma, "vld": Lat.vld, "vst": Lat.vst}[c.kind]
            self._edge(c, i, lat)
            i.cdeps.append(c)
        self.ins.append(i)
        return i
    def _edge(self, a, b, lat):
        if a is b: return
        if a in b.preds:
            if lat > b.preds[a]: b.preds[a] = lat
        else:
            b.preds[a] = lat; a.succs.append(b)
    def _raw(self, d, i, r):
        k = d.kind
        if k == "dsr":
            if d not in i.cdeps: i.cdeps.append(d)
            return Lat.dsr
        if k == "vld":
            if d not in i.cdeps: i.cdeps.append(d)
            return Lat.vld
        if k == "mfma":
            if i.kind == "mfma":
                return 16 if r in i.srcC else Lat.mfma_ab
            return Lat.mfma_valu
        if k in VALU:
            if i.kind == "mfma": return Lat.valu_mfma
            if i.kind == "perm": return 12
            if k == "trans": return Lat.trans
            return 4
        return 4
    def _waw(self, d, i):
        k = d.kind
        if k in ("dsr", "vld"):
            if d not in i.cdeps: i.cdeps.append(d)
            return Lat.dsr if k == "dsr" else Lat.vld
        if k == "mfma": return Lat.mfma_valu
        return 4
    def _war(self, u, i, r):
        if u.kind == "mfma" and r in u.srcC and i.kind != "mfma": return 20
        if u.kind in ("vst", "dsw"): return 12
        return 4

def schedule(prog, mfma_in_order=True, end_slack=0, log=None):
    ins = prog.ins
    mf = [i for i in ins if i.kind == "mfma"]
    def chain(lst, lat):
        for a, b in zip(lst, lst[1:]): prog._edge(a, b, lat)
    if mfma_in_order: chain(mf, 16)
    chain([i for i in ins if i.kind == "bar"], 8)
    chain([i for i in ins if i.nb == "order"], 4)
    for i in ins:
        for p in i.preds: assert p.idx < i.idx, (p, i)
    mt = {}
    for k, m in enumerate(mf): mt[m] = 16 * k
    tend = 16 * len(mf) + end_slack
    for i in reversed(ins):
        if i.kind == "mfma":
            d = mt[i]
        else:
            d = tend
        for s in i.succs:
            d = min(d, s.dl - s.preds[i])
        i.dl = d + i.prio
    for i in ins: i.npred = len(i.preds); i.ready = 0
    out = []
    lg_q = []; lg_done = 0
    vm_q = []; vm_done = 0
    pos_lg = {}; pos_vm = {}
    heap = []
    mf_idx = 0
    for i in ins:
        if i.npred == 0 and i.kind != "mfma": heapq.heappush(heap, (i.dl, i.idx, i))
    t = 0; pipe_free = 0; last_lds_t = -100
    done = 0; n = len(ins)
    stalls = 0
    waits = 0
    def need_waits(i):
        lg = -1; vm = -1
        for c in i.cdeps:
            if c.kind in LGKM: lg = max(lg, pos_lg[c])
            else: vm = max(vm, pos_vm[c])
        return lg, vm
    def emit_wait_if_needed(i):
        nonlocal lg_done, vm_done, t, waits
        lg, vm = need_waits(i)
        parts = []
        if lg >= lg_done:
            tgt = lg
            k = lg + 1
            while k < len(lg_q) and lg_q[k].time + (Lat.dsr if lg_q[k].kind == "dsr" else Lat.dsw) <= t: tgt = k; k += 1
            cnt = len(lg_q) - 1 - tgt
            cnt = min(cnt, 15)
            tgt = len(lg_q) - 1 - cnt
            parts.append("lgkmcnt(%d)" % cnt); lg_done = tgt + 1
        if vm >= vm_done:
            tgt = vm
            k = vm + 1
            while k < len(vm_q) and vm_q[k].kind != "vst" and vm_q[k].time + Lat.dma + 400 <= t: tgt = k; k += 1
            cnt = len(vm_q) - 1 - tgt
            cnt = min(cnt, 63)
            tgt = len(vm_q) - 1 - cnt
            parts.append("vmcnt(%d)" % cnt); vm_done = tgt + 1
        if parts:
            w = Ins("s_waitcnt " + " ".join(parts), "wait"); w.time = t
            out.append(w); t += 4; waits += 1
    def issue(i):
        nonlocal t, pipe_free, last_lds_t, done, mf_idx
        emit_wait_if_needed(i)
        if i.kind in LGKM and t - last_lds_t < 8: t = last_lds_t + 8
        i.time = t
        out.append(i)
        if i.kind in LGKM:
            pos_lg[i] = len(lg_q); lg_q.append(i); last_lds_t = t
        if i.kind in VM:
            pos_vm[i] = len(vm_q); vm_q.append(i)
        if i.kind == "mfma":
            pipe_free = t + 16; mf_idx += 1
        t += dur(i)
        done += 1
        for s in i.succs:
            s.npred -= 1
            s.ready = max(s.ready, i.time + s.preds[i])
            if s.npred == 0 and s.kind != "mfma": heapq.heappush(heap, (s.dl, s.idx, s))
    def wait_cost(i):
        lg, vm = need_waits(i)
        return 4 if (lg >= lg_done or vm >= vm_done) else 0
    while done < n:
        m = mf[mf_idx] if mf_idx < len(mf) else None
        m_ok = m is not None and m.npred == 0
        m_time = max(m.ready, pipe_free) if m_ok else None
        if m_ok and m_time - wait_cost(m) <= t:
            if t + wait_cost(m) < m_time: t = m_time - wait_cost(m)
            issue(m); continue
        cand = None; skipped = []
        while heap:
            dl, idx, i = heapq.heappop(heap)
            if i.ready <= t + wait_cost(i):
                if i.kind in LGKM and t - last_lds_t < 8 and len(skipped) < 6:
                    skipped.append((dl, idx, i)); continue
                cand = i; break
            skipped.append((dl, idx, i))
            if len(skipped) > 400: break
        if cand is None:
            rd = [x for x in skipped if x[2].ready <= t + wait_cost(x[2])]
            if rd:
                rd.sort(key=lambda x: (x[0], x[1])); cand = rd[0][2]; skipped.remove(rd[0])
        if cand is not None and m_ok:
            cost = dur(cand) + wait_cost(cand)
            late = cand.dl - (mf[mf_idx].dl) + (m_time - 0) * 0
            if t + cost > m_time + 0:
                urgent = cand.dl <= (mt[m] - 0) + URG
                if not urgent:
                    skipped.append((cand.dl, cand.idx, cand)); cand = None
        for x in skipped: heapq.heappush(heap, x)
        if cand is not None:
            issue(cand); continue
        nxt = []
        if m_ok: nxt.append(m_time - wait_cost(m))
        for dl, idx, i in heap:
            if i.npred == 0: nxt.append(max(i.ready - wait_cost(i), t + 1))
        if not nxt: raise RuntimeError("deadlock in scheduler; remaining %d; next mfma %r waiting on %r" % (n - done, m, [p for p in (m.preds if m else []) if p.time is None][:5]))
        nt = max(min(nxt), t + 1)
        stalls += nt - t
        t = nt
    if log is not None:
        log.append("sched: n=%d mfma=%d waits=%d est_cycles=%d stall=%d" % (n, len(mf), waits, t, stalls))
    return out

URG = 40

def inorder(prog):
    out = []
    lg_q = []; vm_q = []; lg_done = 0; vm_done = 0; pos = {}
    for i in prog.ins:
        lg = -1; vm = -1
        for c in i.cdeps:
            if c.kind in LGKM: lg = max(lg, pos[c])
            else: vm = max(vm, pos[c])
        parts = []
        if lg >= lg_done:
            cnt = min(len(lg_q) - 1 - lg, 15); parts.append("lgkmcnt(%d)" % cnt); lg_done = len(lg_q) - cnt
        if vm >= vm_done:
            cnt = min(len(vm_q) - 1 - vm, 63); parts.append("vmcnt(%d)" % cnt); vm_done = len(vm_q) - cnt
        if parts: out.append(Ins("s_waitcnt " + " ".join(parts), "wait"))
        out.append(i)
        if i.kind in LGKM: pos[i] = len(lg_q); lg_q.append(i)
        if i.kind in VM: pos[i] = len(vm_q); vm_q.append(i)
    return out

def hazards(seq):
    out = []
    lastw = {}
    lastC = {}
    laststore = {}
    pos = 0
    nn = 0
    for i in seq:
        need = 0
        def req(p, states):
            nonlocal need
            have = pos - p - 1
            if have < states: need = max(need, states - have)
        k = i.kind
        isv = k in VALU
        for r in i.uses:
            w = lastw.get(r)
            if w is None: continue
            p, wk, wi = w
            if wk in VALU:
                if r[0] in "va" and r[1:].isdigit():
                    if k == "mfma": req(p, 2)
                    if k == "perm": req(p, 2)
                    if k == "rfl": req(p, 1)
                    if wk == "trans" and isv and k != "trans": req(p, 1)
                    if wk == "trans" and k not in VALU and k != "mfma": req(p, 1)
                else:
                    if isv: req(p, 2)
                    if k in VM: req(p, 5)
                    if k == "salu": req(p, 4)
            if wk == "rfl":
                if isv: req(p, 2)
                if k in VM: req(p, 5)
                if k == "salu": req(p, 4)
            if wk == "mfma":
                if k == "mfma":
                    if r in i.srcC:
                        if not (wi.defs == i.srcC): req(p, 6)
                    else: req(p, 8)
                else: req(p, 8)
            if r == "m0" and wk == "salu" and k == "dma": req(p, 1)
        for r in i.defs:
            w = lastw.get(r)
            if w is not None:
                p, wk, wi = w
                if wk == "mfma" and k != "mfma": req(p, 8)
                if wk == "mfma" and k == "mfma" and not (wi.defs == i.srcC) and r not in i.srcC: req(p, 8)
            c = lastC.get(r)
            if c is not None and isv: req(c, 3)
            s = laststore.get(r)
            if s is not None: req(s, 2)
        if need > 0:
            while need > 0:
                c = min(need, 16)
                out.append(Ins("s_nop %d" % (c - 1), "nop")); pos += c; need -= c; nn += 1
        out.append(i)
        for r in i.defs: lastw[r] = (pos, k, i)
        if k == "mfma":
            for r in i.srcC: lastC[r] = pos
        if k in ("vst", "dsw") and i.wide:
            for r in i.uses: laststore[r] = pos
        pos += 1
    return out, nn

def check_waits(seq):
    lg_q = []; vm_q = []; lg_done = 0; vm_done = 0; pos = {}
    import re
    for i in seq:
        if i.kind == "wait":
            m = re.search(r"lgkmcnt\((\d+)\)", i.txt)
            if m: lg_done = max(lg_done, len(lg_q) - int(m.group(1)))
            m = re.search(r"vmcnt\((\d+)\)", i.txt)
            if m: vm_done = max(vm_done, len(vm_q) - int(m.group(1)))
            continue
        for c in i.cdeps:
            assert c in pos, ("dep not issued", c, i)
            if c.kind in LGKM: assert pos[c] < lg_done, ("lgkm", c, i)
            else: assert pos[c] < vm_done, ("vm", c, i)
        if i.kind in LGKM: pos[i] = len(lg_q); lg_q.append(i)
        if i.kind in VM: pos[i] = len(vm_q); vm_q.append(i)
    order = {id(x): n for n, x in enumerate(seq)}
    for i in seq:
        for p in i.preds: assert order[id(p)] < order[id(i)], ("order", p, i)
    return True
```

```python
from gen import *

def prologue_text(o):
    L = []
    A = L.append
    A("s_cmp_ge_u32 s2, 256")
    A("s_cbranch_scc1 L_end_main")
    A("s_load_dwordx16 s[80:95], s[0:1], 0")
    A("s_load_dwordx4 s[4:7], s[0:1], 64")
    A("s_load_dwordx2 s[96:97], s[0:1], 88")
    A("v_lshrrev_b32 v1, 6, v0")
    A("v_and_b32 v%d, 63, v0" % vL)
    A("s_and_b32 s%d, s2, 7" % sJ)
    A("v_readfirstlane_b32 s%d, v1" % sW)
    A("s_lshr_b32 s%d, s2, 3" % sRB)
    A("s_nop 2")
    A("s_lshl_b32 s%d, s%d, 12" % (sW4096, sW))
    A("s_mul_i32 s%d, s%d, 7168" % (sW7168, sW))
    A("s_mul_i32 s%d, s%d, %d" % (sWdG, sW, 56*896))
    A("s_mul_i32 s%d, s%d, %d" % (sWoG, sW, 32*896))
    A("s_lshr_b32 s98, s%d, 1" % sW)
    A("s_and_b32 s99, s%d, 1" % sW)
    A("s_mul_i32 s%d, s98, 14368" % sW1024x7)
    A("s_mul_i32 s3, s99, 7168")
    A("s_add_u32 s%d, s%d, s3" % (sW1024x7, sW1024x7))
    for p in range(7):
        A("s_add_u32 s3, s%d, %d" % (sJ, 1 + p))
        A("s_cmp_ge_u32 s3, 7\ns_cselect_b32 s100, 7, 0\ns_sub_u32 s3, s3, s100")
        A("s_cmp_ge_u32 s3, 7\ns_cselect_b32 s100, 7, 0\ns_sub_u32 s3, s3, s100")
        A("s_lshl_b32 s%d, s3, 7" % (sSL + p))
        A("s_mul_i32 s100, s%d, 7\ns_add_u32 s100, s100, s3\ns_lshl_b32 s100, s100, 3\ns_add_u32 s100, s100, s%d\ns_lshl_b32 s%d, s100, 14" % (sRB, sJ, sWSO + p))
    A("s_waitcnt lgkmcnt(0)")
    def srd(dst, plo, off_expr, rec):
        if off_expr is None:
            A("s_mov_b32 s%d, s%d" % (dst, plo)); A("s_and_b32 s%d, s%d, 0xffff" % (dst + 1, plo + 1))
        else:
            for x in off_expr: A(x)
            A("s_add_u32 s%d, s%d, s3" % (dst, plo)); A("s_addc_u32 s%d, s%d, 0" % (dst + 1, plo + 1))
            A("s_and_b32 s%d, s%d, 0xffff" % (dst + 1, dst + 1))
        if isinstance(rec, int): A("s_mov_b32 s%d, %d" % (dst + 2, rec))
        else: A(rec % (dst + 2))
        A("s_mov_b32 s%d, 0x20000" % (dst + 3))
    srd(S_X, 80, ["s_mul_i32 s3, s%d, 57344" % sRB], 57344)
    srd(S_K, 82, ["s_lshl_b32 s3, s%d, 20" % sJ, "s_add_u32 s3, s3, 786432"], 262144)
    srd(S_V, 84, ["s_lshl_b32 s3, s%d, 20" % sJ, "s_add_u32 s3, s3, 786432"], 262144)
    srd(S_WQ, 86, ["s_lshl_b32 s3, s%d, 10" % sJ, "s_lshl_b32 s100, s%d, 8" % sW, "s_add_u32 s3, s3, s100"], "s_sub_u32 s%%d, %d, s3" % SZ_WQ)
    srd(S_WO, 88, ["s_mul_i32 s3, s%d, 458752" % sJ], 458752)
    A("s_cmp_eq_u32 s98, 0\ns_cselect_b32 s92, s92, s94\ns_cselect_b32 s93, s93, s95")
    srd(S_WF, 92, ["s_mul_i32 s3, s%d, 448" % sJ], "s_sub_u32 s%%d, %d, s3" % SZ_WG)
    srd(S_WD, 4, ["s_mul_i32 s3, s%d, 200704" % sJ], 200704)
    srd(S_WS, 96, None, o.get("ws_bytes", WS_PART))
    srd(S_OUT, 6, None, SZ_X)
    return L

class Main(G):
    def addr_setup(self):
        v = self.valu
        l = "v%d" % vL
        t = ["v%d" % (GT + k) for k in range(16)]
        g4, c, cc, c2 = "v4", "v5", "v6", "v7"
        sw = "s%d" % sW
        v("v_lshrrev_b32", g4, 4, l); v("v_and_b32", c, 15, l); v("v_and_b32", cc, 3, l); v("v_lshrrev_b32", c2, 2, c)
        V = lambda n: "v%d" % n
        v("v_lshlrev_b32", t[0], 4, g4)
        self.salu("s_lshl_b32", "s98", sw, 4)
        v("v_add_u32", t[1], "s98", c)
        v("v_mul_u32_u24", t[1], 896, t[1])
        v("v_add_u32", V(vLN), t[0], t[1])
        self.x_loads()
        self.salu("s_and_b32", "s99", sw, 1)
        self.salu("s_mul_i32", "s99", "s99", 448)
        for jj in range(7):
            q, r, ch = t[0], t[1], t[2]
            v("v_add_u32", q, 64*jj, l); v("v_add_u32", q, "s99", q)
            v("v_mul_u32_u24", r, 2341, q); v("v_lshrrev_b32", r, 16, r)
            v("v_mul_u32_u24", ch, 28, r); v("v_sub_u32", ch, q, ch)
            v("v_bfe_u32", t[3], r, 3, 1); v("v_xor_b32", ch, ch, t[3])
            v("v_mul_u32_u24", r, 3584, r); v("v_lshlrev_b32", ch, 4, ch)
            v("v_add_u32", r, r, ch)
            if jj & 3: v("v_subrev_u32", V(vFD + jj), (jj & 3)*1024, r)
            else: v("v_mov_b32", V(vFD + jj), r)
        self.f_prefetch()
        r8 = "v8"
        v("v_lshlrev_b32", r8, 3, g4); v("v_add_u32", r8, r8, c2)
        v("v_mul_u32_u24", t[0], 448, r8)
        v("v_lshrrev_b32", t[1], 1, cc); v("v_mul_u32_u24", t[1], 14368, t[1]); v("v_add_u32", t[0], t[0], t[1])
        v("v_and_b32", t[1], 1, g4); v("v_xor_b32", t[1], sw, t[1]); v("v_lshlrev_b32", t[1], 4, t[1]); v("v_add_u32", t[0], t[0], t[1])
        v("v_and_b32", t[1], 1, cc); v("v_lshlrev_b32", t[1], 3, t[1]); v("v_add_u32", t[0], t[0], t[1])
        v("v_add_u32", V(vFR[0]), Y0, t[0])
        v("v_lshlrev_b32", V(vFRG), 4, l); v("v_add_u32", V(vFRG1), 65536, V(vFRG))
        f = t[4]
        v("v_bfe_u32", f, c, 3, 1); v("v_and_b32", t[1], 1, g4); v("v_lshlrev_b32", t[1], 1, t[1]); v("v_or_b32", f, f, t[1])
        v("v_lshlrev_b32", t[0], 7, r8); v("v_lshlrev_b32", t[1], 3, cc); v("v_add_u32", t[0], t[0], t[1])
        self.salu("s_add_u32", "s98", "s%d" % sW4096, QS[0])
        v("v_add_u32", t[0], "s98", t[0])
        for mt in range(4):
            v("v_xor_b32", t[1], mt, f); v("v_lshlrev_b32", t[1], 5, t[1]); v("v_add_u32", V(vQR + mt), t[0], t[1])
        u, half, l3 = t[5], t[6], t[7]
        v("v_bfe_u32", u, l, 1, 2); v("v_and_b32", half, 1, l); v("v_lshrrev_b32", l3, 3, l)
        for pp in range(4):
            v("v_bfe_u32", t[0], l, 4, 1)
            if pp & 1: v("v_or_b32", t[0], 2, t[0])
            v("v_xor_b32", t[0], u, t[0]); v("v_lshlrev_b32", t[0], 1, t[0]); v("v_or_b32", t[0], t[0], half); v("v_lshlrev_b32", t[0], 4, t[0])
            v("v_lshlrev_b32", t[1], 13, l3); v("v_add_u32", t[0], t[0], t[1])
            v("v_add_u32", V(vQD + pp), pp*(8*8192 - 1024), t[0])
        v("v_lshrrev_b32", t[0], 5, l); v("v_lshlrev_b32", t[0], 10, t[0])
        v("v_and_b32", t[1], 1, g4); v("v_lshlrev_b32", t[1], 8, t[1]); v("v_add_u32", t[0], t[0], t[1])
        v("v_lshlrev_b32", t[1], 4, c); v("v_add_u32", t[0], t[0], t[1])
        self.salu("s_and_b32", "s98", sw, 1); self.salu("s_lshl_b32", "s98", "s98", 9)
        self.salu("s_lshr_b32", "s99", sw, 1); self.salu("s_lshl_b32", "s99", "s99", 3)
        self.salu("s_add_u32", "s98", "s98", "s99"); self.salu("s_add_u32", "s98", "s98", HB)
        v("v_add_u32", V(vHW), "s98", t[0])
        v("v_lshrrev_b32", t[0], 1, g4); v("v_lshlrev_b32", t[0], 8, t[0])
        v("v_lshlrev_b32", t[1], 4, c); v("v_add_u32", t[0], t[0], t[1])
        v("v_and_b32", t[1], 1, g4); v("v_lshlrev_b32", t[1], 3, t[1]); v("v_add_u32", t[0], t[0], t[1])
        self.salu("s_lshl_b32", "s98", sw, 14)
        v("v_add_u32", V(vQW), "s98", t[0])
        self.salu("s_lshr_b32", "s98", sw, 1); self.salu("s_lshl_b32", "s98", "s98", 15)
        self.salu("s_and_b32", "s99", sw, 1); self.salu("s_lshl_b32", "s99", "s99", 11)
        self.salu("s_add_u32", "s98", "s98", "s99")
        v("v_add_u32", V(vQF), "s98", V(vFRG))
        l5, l31 = t[8], t[9]
        v("v_lshrrev_b32", l5, 5, l); v("v_and_b32", l31, 31, l)
        self.salu("s_lshl_b32", "s98", sw, 3)
        v("v_add_u32", t[0], "s98", l5); v("v_lshlrev_b32", t[10], 9, t[0])
        for pp in range(4):
            v("v_add_u32", t[1], 2*pp, t[0]); v("v_and_b32", t[1], 15, t[1]); v("v_xor_b32", t[1], l31, t[1])
            v("v_lshlrev_b32", t[1], 4, t[1]); v("v_add_u32", V(vKD + pp), t[10], t[1])
            v("v_add_u32", t[1], 2*pp, l5); v("v_and_b32", t[1], 7, t[1]); v("v_lshlrev_b32", t[1], 1, t[1]); v("v_xor_b32", t[1], l31, t[1])
            v("v_lshlrev_b32", t[1], 4, t[1]); v("v_add_u32", V(vVD + pp), t[10], t[1])
        v("v_lshlrev_b32", t[0], 9, c); v("v_add_u32", t[0], QS[0], t[0])
        for s3 in range(4):
            v("v_add_u32", t[1], 4*s3, g4); v("v_xor_b32", t[1], t[1], c); v("v_lshlrev_b32", t[1], 4, t[1]); v("v_add_u32", V(vKR + s3), t[0], t[1])
        l2 = t[11]
        v("v_lshrrev_b32", l2, 2, l); v("v_lshlrev_b32", t[0], 9, l2); v("v_lshlrev_b32", t[1], 3, cc); v("v_add_u32", t[0], t[0], t[1])
        v("v_and_b32", t[2], 7, l2)
        for m7 in range(8):
            v("v_xor_b32", t[1], m7, t[2]); v("v_lshlrev_b32", t[1], 5, t[1]); v("v_add_u32", V(vVR + m7), t[0], t[1])
        v("v_bfe_u32", t[0], l, 4, 2); v("v_xor_b32", t[0], u, t[0]); v("v_lshlrev_b32", t[0], 1, t[0]); v("v_or_b32", t[0], t[0], half)
        v("v_lshlrev_b32", t[0], 4, t[0]); v("v_mul_u32_u24", t[1], 896, l3); v("v_add_u32", t[0], t[0], t[1])
        for pp in range(4): v("v_add_u32", V(vWD + pp), pp*(7168 - 1024), t[0])
        v("v_lshlrev_b32", t[0], 7, l2); v("v_lshlrev_b32", t[1], 3, cc); v("v_add_u32", t[0], t[0], t[1])
        v("v_bfe_u32", t[1], l, 3, 2); v("v_xor_b32", t[1], sw, t[1]); v("v_lshlrev_b32", t[1], 5, t[1])
        v("v_add_u32", V(vWR), t[0], t[1]); v("v_add_u32", V(vWR + 1), 65536, V(vWR)); v("v_add_u32", V(vWR + 2), 131072, V(vWR))
        self.salu("s_lshl_b32", "s98", sw, 11)
        v("v_add_u32", V(vPS), "s98", V(vFRG))

    def x_loads(self):
        self.xl = []
        for s in range(NKS):
            i = self.add("buffer_load_dwordx4 v[%d:%d], v%d, s[%d:%d], 0 offen offset:%d" % (112 + 4*s, 115 + 4*s, vLN, S_X, S_X + 3, 64*s), "vld",
                         R("v", 112 + 4*s, 4), ["v%d" % vLN] + R("s", S_X, 4), order=True, prio=-100000)
            self.xl.append(i)

    def layernorm(self):
        v = self.valu
        F = 0
        RAW = 112
        for k in range(56):
            v("v_lshlrev_b32", "v%d" % (F + 2*k), 16, "v%d" % (RAW + k))
            v("v_and_b32", "v%d" % (F + 2*k + 1), "0xffff0000", "v%d" % (RAW + k))
        acc = [168, 170, 172, 174]
        pk = lambda op, d, *s, extra="": v(op, ("v", d, 2), *[("v", x, 2) if isinstance(x, int) else x for x in s], extra=extra)
        for k in range(4): pk("v_pk_add_f32", acc[k], F + 2*k, F + 2*(k + 4))
        for k in range(8, 56): pk("v_pk_add_f32", acc[k % 4], acc[k % 4], F + 2*k)
        pk("v_pk_add_f32", acc[0], acc[0], acc[1]); pk("v_pk_add_f32", acc[2], acc[2], acc[3]); pk("v_pk_add_f32", acc[0], acc[0], acc[2])
        v("v_add_f32", "v168", "v168", "v169")
        self.xreduce("v168", "v_add_f32", "v170")
        v("v_mul_f32", "v168", f32hex(-1.0/448), "v168")
        v("v_mov_b32", "v169", "v168")
        for k in range(56): pk("v_pk_add_f32", F + 2*k, F + 2*k, 168)
        acc2 = [170, 172, 174, 176]
        for k in range(56):
            a = acc2[k % 4]
            if k < 4: pk("v_pk_mul_f32", a, F + 2*k, F + 2*k)
            else: pk("v_pk_fma_f32", a, F + 2*k, F + 2*k, a)
        pk("v_pk_add_f32", 170, 170, 172); pk("v_pk_add_f32", 174, 174, 176); pk("v_pk_add_f32", 170, 170, 174)
        v("v_add_f32", "v170", "v170", "v171")
        self.xreduce("v170", "v_add_f32", "v172")
        v("v_mov_b32", "v172", f32hex(1e-5))
        v("v_fmac_f32", "v172", f32hex(1.0/448), "v170")
        self.trans("v_rsq_f32", "v172", "v172")
        v("v_mov_b32", "v173", "v172")
        xn = self.tile("xn", [(X0, 57344)])
        self.salu("s_lshl_b32", "s98", "s%d" % sW, 10)
        v("v_add_u32", "v%d" % vLN, "s98", "v%d" % vFRG)
        for s in range(NKS):
            for k in range(4*s, 4*s + 4):
                pk("v_pk_mul_f32", F + 2*k, F + 2*k, 172)
                v("v_cvt_pk_bf16_f32", "v%d" % (RAW + k), "v%d" % (F + 2*k), "v%d" % (F + 2*k + 1))
            self.dsw(vLN, ("v", RAW + 4*s), 4, s*4096, xn)
        return xn
    def xreduce(self, x, op, tmp):
        v = self.valu
        v("v_mov_b32", tmp, x); v("v_permlane16_swap_b32", x, tmp); v(op, x, x, tmp)
        v("v_mov_b32", tmp, x); v("v_permlane32_swap_b32", x, tmp); v(op, x, x, tmp)

    def f_slot(self, s): return FSLOT[(s + 2) % 3]
    def f_dma(self, s):
        slot = self.f_slot(s)
        t = self.tile("F%d" % s, [(slot, FS)])
        so = None
        if s > 0:
            so = self.stemp(); self.salu("s_mov_b32", "s%d" % so, s*32*WGROW)
        for jj in range(7):
            if jj in (0, 4): self.setm0(sW1024x7, slot + (4096 if jj else 0))
            self.dma(S_WF, vFD + jj, so, (jj & 3)*1024, t)
        self.Ft[s] = t
    def f_prefetch(self):
        self.Ft = {}
        for s in range(3): self.f_dma(s)

    def ring(self, kind, base, n):
        st = {"k": 0}
        def nxt():
            b = base + 4*(st["k"] % n); st["k"] += 1
            return (kind, b)
        return nxt

    def stage_F(self, xn):
        self.barrier(publish=[xn, self.Ft[0]])
        for s in range(NKS):
            for n in range(4):
                self.dsr128(("a", A_XN + (s*4 + n)*4), vFRG, (s*4 + n)*1024, xn)
        self.xn = xn
        rg = self.ring("a", A_RINGFQ, 8)
        self.rgFQ = rg
        for s in range(NKS):
            if s > 0:
                fr = [self.Ft[s - 1]]
                if s == 3: fr.append(xn)
                self.barrier(publish=[self.Ft[s]], free=fr)
                if s + 2 < NKS: self.f_dma(s + 2)
                if s == 12: self.q_dma(0)
                if s == 13:
                    for k in (1, 2, 3): self.q_dma(k)
            t = self.Ft[s]; so = self.f_slot(s) - Y0
            for i in range(7):
                a = rg()
                for h in range(2):
                    self.dsrtr((a[0], a[1] + 2*h), vFR[0], so + i*64 + h*1792, t)
                for n in range(4):
                    d = ("v", ACCF + (i*4 + n)*4)
                    self.mfma(d, a, ("a", A_XN + (s*4 + n)*4), d if s > 0 else 0)

    def gelu(self, Ht, tiles):
        v = self.valu
        c1 = -2.0*math.sqrt(2.0/math.pi)*LOG2E
        c2 = c1*0.044715
        k = 0
        for i in tiles:
            for p in range(2):
                hs = []
                base = GT + 8*(k % 2) ; k += 1
                for r in range(4):
                    X = "v%d" % (ACCF + (i*4 + 2*p)*4 + r); Y = "v%d" % (ACCF + (i*4 + 2*p + 1)*4 + r)
                    T = "v%d" % (base + r)
                    v("v_permlane32_swap_b32", X, Y)
                    v("v_mul_f32", T, X, X)
                    v("v_fmaak_f32", T, "s%d" % self.sC2, T, f32hex(c1)) if False else v("v_fma_f32", T, T, "s%d" % self.sC2, "v%d" % self.vC1)
                    v("v_mul_f32", T, X, T)
                    self.trans("v_exp_f32", T, T)
                    v("v_mul_f32", Y, X, Y)
                    v("v_add_f32", T, "1.0", T)
                    self.trans("v_rcp_f32", T, T)
                    v("v_mul_f32", T, Y, T)
                P = base + 4
                v("v_cvt_pk_bf16_f32", "v%d" % P, "v%d" % base, "v%d" % (base + 1))
                v("v_cvt_pk_bf16_f32", "v%d" % (P + 1), "v%d" % (base + 2), "v%d" % (base + 3))
                self.dsw(vHW, ("v", P), 2, i*4096 + p*2048, Ht)

    def q_dma(self, idx):
        g, s = divmod(idx, NKS)
        q = idx % 4
        rngs = [(QS[q], 16384)]
        t = self.tile("Q%d" % idx, rngs, private=True)
        so = self.stemp(); self.salu("s_mov_b32", "s%d" % so, s*32*WQROW + g*128)
        self.setm0(sW4096, QS[q])
        for pp in range(4): self.dma(S_WQ, vQD + pp, so, pp*1024, t)
        self.Qt[idx] = t
    def stage_Q(self):
        v = self.valu
        rg = self.rgFQ
        self.barrier(free=[self.Ft[13]])
        Ht = self.tile("H", [(HB, 28672)])
        self.Ht = Ht
        QT = self.tile("QT", [(X0, 65536)])
        self.QT = QT
        self.gelu(Ht, range(7))
        last = {}
        for idx in range(28):
            g, s = divmod(idx, NKS)
            t = self.Qt[idx]; q = idx % 4
            ms = []
            for mt in range(4):
                a = rg()
                for h in range(2):
                    self.dsrtr((a[0], a[1] + 2*h), vQR + mt, q*16384 + h*512, t)
                for n in range(4):
                    d = ("v", ACCQ[g] + (mt*4 + n)*4)
                    ms.append(self.mfma(d, a, ("a", A_XN + (s*4 + n)*4), d if s > 0 else 0))
            if idx <= 23:
                self.free_private(t, [ms[-1]])
                self.q_dma(idx + 4)
            if idx == 25:
                self.barrier(free=[self.Qt[24], self.Qt[25]])
                self.k_dma(0); self.k_dma(1)
            if s == NKS - 1: self.q_epilogue(g)
        self.barrier(publish=[QT, Ht, self.Kt[0]], free=[self.Qt[26], self.Qt[27]])
        self.k_dma(2); self.k_dma(3)
        for s in range(8):
            for n in range(2):
                self.dsr128(("a", A_Q + (s*2 + n)*4), vQF, (s*4 + n)*1024, QT)
    def q_epilogue(self, g):
        v = self.valu
        for mt in range(4):
            for n in range(4):
                b = ACCQ[g] + (mt*4 + n)*4
                for r in range(4): v("v_mul_f32", "v%d" % (b + r), "s%d" % self.sQS, "v%d" % (b + r))
                v("v_cvt_pk_bf16_f32", "v%d" % b, "v%d" % b, "v%d" % (b + 1))
                v("v_cvt_pk_bf16_f32", "v%d" % (b + 1), "v%d" % (b + 2), "v%d" % (b + 3))
                self.dsw(vQW, ("v", b), 2, ((2*g + (mt >> 1))*4 + n)*1024 + (mt & 1)*512, self.QT)

    def k_dma(self, it):
        q = it % 4
        t = self.tile("K%d" % it, [(QS[q], 16384)])
        so = None
        if it: so = self.stemp(); self.salu("s_mov_b32", "s%d" % so, it*16384)
        self.setm0(sW4096, QS[q])
        for pp in range(4): self.dma(S_K, vKD + pp, so, pp*1024, t)
        self.Kt[it] = t
    def v_dma(self, it):
        q = it % 4
        t = self.tile("V%d" % it, [(X0 + q*16384, 16384)])
        so = None
        if it: so = self.stemp(); self.salu("s_mov_b32", "s%d" % so, it*16384)
        self.setm0(sW4096, X0 + q*16384)
        for pp in range(4): self.dma(S_V, vVD + pp, so, pp*1024, t)
        self.Vt[it] = t
    def S_tile(self, it):
        rg = self.rgFL; t = self.Kt[it]; sb = SBUF[it % 2]
        for mtk in range(2):
            for s in range(8):
                a = rg()
                self.dsr128(a, vKR + (s & 3), (it % 4)*16384 + mtk*8192 + (s >> 2)*256, t)
                for n in range(2):
                    d = ("v", sb + (mtk*2 + n)*4)
                    c = d if s > 0 else (0 if it == 0 else ("v", CINI + 4*n))
                    self.mfma(d, a, ("a", A_Q + (s*2 + n)*4), c)
    def softmax(self, it):
        v = self.valu; sb = SBUF[it % 2]; pb = PBUF[it % 2]
        S = lambda mtk, n, r: "v%d" % (sb + (mtk*2 + n)*4 + r)
        if it == 0:
            for n in range(2):
                m = "v%d" % (TMPF + n); tmp = "v%d" % (TMPF + 2 + n)
                x = [S(mtk, n, r) for mtk in range(2) for r in range(4)]
                v("v_max3_f32", m, x[0], x[1], x[2]); v("v_max3_f32", m, m, x[3], x[4]); v("v_max3_f32", m, m, x[5], x[6]); v("v_max_f32", m, m, x[7])
                self.xreduce(m, "v_max_f32", tmp)
                for r in range(4): v("v_sub_f32", "v%d" % (CINI + 4*n + r), 0, m)
                for xx in x: v("v_sub_f32", xx, xx, m)
                v("v_mov_b32", "v%d" % (MX + n), 0)
        else:
            for n in range(2):
                m = "v%d" % (MX + n)
                x = [S(mtk, n, r) for mtk in range(2) for r in range(4)]
                for k in range(4): v("v_max3_f32", m, m, x[2*k], x[2*k + 1])
        for n in range(2):
            for mtk in range(2):
                for r in range(4): self.trans("v_exp_f32", S(mtk, n, r), S(mtk, n, r))
                v("v_cvt_pk_bf16_f32", "v%d" % (pb + n*4 + mtk*2), S(mtk, n, 0), S(mtk, n, 1))
                v("v_cvt_pk_bf16_f32", "v%d" % (pb + n*4 + mtk*2 + 1), S(mtk, n, 2), S(mtk, n, 3))
    def PV(self, it):
        rg = self.rgFL; t = self.Vt[it]; pb = PBUF[it % 2]
        for mt in range(16):
            a = rg()
            for h in range(2):
                self.dsrtr((a[0], a[1] + 2*h), vVR + (mt & 7), (it % 4)*16384 + h*8192 + (mt >> 3)*256, t)
            for n in range(2):
                d = ("v", OACC + (mt*2 + n)*4)
                self.mfma(d, a, ("v", pb + 4*n), d if it > 0 else 0)
        for n in range(2):
            d = ("v", LACC + 4*n)
            self.mfma(d, ("v", ONES), ("v", pb + 4*n), d if it > 0 else 0)
    def stage_flash(self):
        v = self.valu
        self.rgFL = self.ring("a", A_RINGFL, 20)
        for r in range(4): v("v_mov_b32", "v%d" % (ONES + r), "0x3f803f80")
        self.S_tile(0)
        self.barrier(publish=[self.Kt[1]], free=[self.QT, self.Kt[0]])
        for k in range(3): self.v_dma(k)
        self.k_dma(4)
        for s in range(7):
            for n in range(4):
                self.dsr128(("a", A_H + (s*4 + n)*4), vFRG1, HB - 65536 + (s*4 + n)*1024, self.Ht)
        self.softmax(0)
        self.S_tile(1)
        self.softmax(1)
        for it in range(16):
            pub = [self.Vt[it]]; fr = []
            if it + 2 < 16:
                pub.append(self.Kt[it + 2]); fr.append(self.Kt[it + 1])
            elif it + 1 < 16: fr.append(self.Kt[it + 1])
            if it > 0: fr.append(self.Vt[it - 1])
            if it == 1: fr.append(self.Ht)
            self.barrier(publish=pub, free=fr)
            if it + 5 < 16: self.k_dma(it + 5)
            if it == 0: self.v_dma(3)
            elif it + 3 < 16: self.v_dma(it + 3)
            if it == 10: self.wd_dma(0)
            if it == 12: self.wd_dma(1)
            if it == 14: self.wd_dma(2)
            self.PV(it) if False else None
            if it + 2 < 16: self.S_tile(it + 2)
            self.PV(it)
            if it + 2 < 16: self.softmax(it + 2)

    def wd_dma(self, p):
        slot = WDS[p % 3]
        t = self.tile("Wd%d" % p, [(slot, 28672)])
        s1 = self.stemp(); self.salu("s_add_u32", "s%d" % s1, "s%d" % sWdG, "s%d" % (sSL + p))
        s2 = self.stemp(); self.salu("s_add_u32", "s%d" % s2, "s%d" % s1, 4*7168)
        for jj in range(7):
            if jj in (0, 4): self.setm0(sW7168, slot + (4096 if jj else 0))
            self.dma(S_WD, vWD + (jj & 3), s1 if jj < 4 else s2, (jj & 3)*1024, t)
        self.Wdt[p] = t
    def wo_dma(self, k, slot):
        p, r = divmod(k, 4)
        t = self.tile("Wo%d" % k, [(slot, 16384)])
        s1 = self.stemp(); self.salu("s_add_u32", "s%d" % s1, "s%d" % sWoG, "s%d" % (sSL + p))
        if r:
            self.salu("s_add_u32", "s%d" % s1, "s%d" % s1, r*128*XROW)
        self.setm0(sW4096, slot)
        for pp in range(4): self.dma(S_WO, vWD + pp, s1, pp*1024, t)
        t.slot = slot
        self.Wot[k] = t
    def wread(self, a, addr, tile):
        win = addr >> 16
        for h in range(2):
            self.dsrtr((a[0], a[1] + 2*h), vWR + win, (addr & 0xffff) + h*2048, tile)
    def store_partial(self, acc, p, br, pk):
        v = self.valu
        for n in range(4):
            v("v_cvt_pk_bf16_f32", "v%d" % (pk + 2*n), "v%d" % (acc + 4*n), "v%d" % (acc + 4*n + 1))
            v("v_cvt_pk_bf16_f32", "v%d" % (pk + 2*n + 1), "v%d" % (acc + 4*n + 2), "v%d" % (acc + 4*n + 3))
        so = sWSO + p
        if br:
            so2 = self.stemp(); self.salu("s_add_u32", "s%d" % so2, "s%d" % so, 8192); so = so2
        for h in range(2):
            self.add("buffer_store_dwordx4 v[%d:%d], v%d, s[%d:%d], s%d offen offset:%d" % (pk + 4*h, pk + 4*h + 3, vPS, S_WS, S_WS + 3, so, h*1024),
                     "vst", [], R("v", pk + 4*h, 4) + ["v%d" % vPS, "s%d" % so] + R("s", S_WS, 4), wide=True, order=True)
    def o_epilogue(self, OT):
        v = self.valu
        for n in range(2):
            self.trans("v_rcp_f32", "v%d" % (LACC + 4*n), "v%d" % (LACC + 4*n))
        for sp in range(8):
            for n in range(2):
                b0 = OACC + ((2*sp)*2 + n)*4; b1 = OACC + ((2*sp + 1)*2 + n)*4
                for b in (b0, b1):
                    for r in range(4): v("v_mul_f32", "v%d" % (b + r), "v%d" % (LACC + 4*n), "v%d" % (b + r))
                v("v_cvt_pk_bf16_f32", "v%d" % b0, "v%d" % b0, "v%d" % (b0 + 1))
                v("v_cvt_pk_bf16_f32", "v%d" % (b0 + 1), "v%d" % (b0 + 2), "v%d" % (b0 + 3))
                v("v_cvt_pk_bf16_f32", "v%d" % (b0 + 2), "v%d" % b1, "v%d" % (b1 + 1))
                v("v_cvt_pk_bf16_f32", "v%d" % (b0 + 3), "v%d" % (b1 + 2), "v%d" % (b1 + 3))
                self.dsw(vQF, ("v", b0), 4, (sp*4 + n)*1024, OT)
    def ofrag(self, s, n):
        k = s*4 + n
        return ("a", A_OF + 4*k) if k < 36 else ("v", OFV + 4*(k - 36))
    def stage_final(self):
        rg = self.ring("v", RINGV, 6)
        self.barrier(publish=[self.Wdt[0]], free=[self.Vt[15]])
        OT = self.tile("OT", [(X0, 65536)])
        self.o_epilogue(OT)
        def down(p):
            t = self.Wdt[p]; slot = WDS[p % 3]; acc = ACCD[p % 2]
            for s in range(7):
                a = rg(); self.wread(a, slot + s*4096, t)
                for n in range(4):
                    d = ("v", acc + 4*n)
                    self.mfma(d, a, ("a", A_H + (s*4 + n)*4), d if s > 0 else 0)
            self.store_partial(acc, p, 1, PK)
        down(0)
        self.barrier(publish=[self.Wdt[1]], free=[self.Wdt[0]]); self.wd_dma(3)
        down(1)
        self.barrier(publish=[self.Wdt[2], OT], free=[self.Wdt[1]]); self.wd_dma(4)
        for s in range(16):
            for n in range(4):
                self.dsr128(self.ofrag(s, n), vFRG, (s*4 + n)*1024, OT)
        down(2)
        self.barrier(publish=[self.Wdt[3]], free=[self.Wdt[2], OT]); self.wd_dma(5)
        xs = [X0 + 16384*q for q in range(4)]
        for k in range(4): self.wo_dma(k, xs[k])
        down(3)
        self.barrier(publish=[self.Wdt[4]], free=[self.Wdt[3]]); self.wd_dma(6)
        down(4)
        self.barrier(publish=[self.Wdt[5]], free=[self.Wdt[4]])
        self.wo_dma(4, 98304)
        down(5)
        self.barrier(publish=[self.Wdt[6]], free=[self.Wdt[5]])
        self.wo_dma(5, 122880)
        down(6)
        nslots_free = []
        self.barrier(publish=[self.Wot[0], self.Wot[1]], free=[self.Wdt[6]])
        self.wo_dma(6, 65536); self.wo_dma(7, 81920); self.wo_dma(8, 139264)
        nxt = 9
        for k in range(28):
            p, r = divmod(k, 4)
            if k >= 2 and k % 2 == 0:
                fr = [self.Wot[k - 2], self.Wot[k - 1]]
                self.barrier(publish=[self.Wot[k], self.Wot[k + 1]], free=fr)
                for o in fr:
                    if nxt < 28: self.wo_dma(nxt, o.slot); nxt += 1
            t = self.Wot[k]; acc = ACCS[p % 2]
            for ss in range(4):
                s = 4*r + ss
                a = rg(); self.wread(a, t.slot + ss*4096, t)
                for n in range(4):
                    d = ("v", acc + 4*n)
                    self.mfma(d, a, self.ofrag(s, n), d if s > 0 else 0)
            if r == 3: self.store_partial(acc, p, 0, PK + 0 if False else PK)

    def dump(self, regs, slot):
        base = WS_PART + slot*(1024*256*256)
        self.salu("s_lshl_b32", "s98", "s2", 2); self.salu("s_add_u32", "s98", "s98", "s%d" % sW)
        self.salu("s_mul_i32", "s98", "s98", 65536); self.salu("s_add_u32", "s98", "s98", base)
        self.valu("v_lshlrev_b32", "v%d" % GTD, 2, "v%d" % vL)
        for k, r in enumerate(regs):
            so = self.stemp(); self.salu("s_add_u32", "s%d" % so, "s98", k*256)
            src = r
            if r[0] == "a":
                self.valu("v_accvgpr_read_b32", "v%d" % (GTD + 1), r); src = "v%d" % (GTD + 1)
            self.add("buffer_store_dword %s, v%d, s[%d:%d], s%d offen" % (src, GTD, S_WS, S_WS + 3, so), "vst", [],
                     [src, "v%d" % GTD, "s%d" % so] + R("s", S_WS, 4), order=True)

GTD = 198

def build_main(o):
    m = Main(o)
    m.Qt = {}; m.Kt = {}; m.Vt = {}; m.Wdt = {}; m.Wot = {}
    m.sC2 = 67; m.sQS = 68; m.vC1 = 203
    c1 = -2.0*math.sqrt(2.0/math.pi)*LOG2E
    m.salu("s_mov_b32", "s67", f32hex(c1*0.044715)); m.salu("s_mov_b32", "s68", f32hex(LOG2E/16.0))
    m.addr_setup()
    m.valu("v_mov_b32", "v203", f32hex(c1))
    xn = m.layernorm()
    stop = o.get("stop")
    if stop == "ln":
        m.dump(R("v", 112, 56), 0); return m
    m.stage_F(xn)
    if stop == "F":
        m.dump(R("v", ACCF, 112), 0); return m
    m.stage_Q()
    if stop == "Q":
        m.dump(R("a", A_Q, 64), 0)
        for s in range(7):
            for n in range(4): m.dsr128(("a", A_H + (s*4 + n)*4), vFRG1, HB - 65536 + (s*4 + n)*1024, m.Ht)
        m.dump(R("a", A_H, 112), 1); return m
    m.stage_flash()
    if stop == "flash":
        m.dump(R("v", OACC, 128) + R("v", LACC, 8) + R("v", MX, 2) + R("v", CINI, 8), 0); return m
    m.stage_final()
    return m
```

```python
import sys
from stages import *

HDR = """; fused LN + GQA sliding-window attention + GEGLU FFN + gated residual (generated by my own generator scripts)
"""
def kd(name, nv, ns, acc):
    return """.section .rodata,"a"
.p2align 6
.amdhsa_kernel %s
  .amdhsa_next_free_vgpr %d
  .amdhsa_next_free_sgpr %d
  .amdhsa_accum_offset %d
  .amdhsa_group_segment_fixed_size 0
  .amdhsa_kernarg_size 96
  .amdhsa_user_sgpr_count 2
  .amdhsa_user_sgpr_kernarg_segment_ptr 1
  .amdhsa_system_sgpr_workgroup_id_x 1
.end_amdhsa_kernel
.text
""" % (name, nv, ns, acc)

def reduce_kernel():
    L = []; A = L.append
    A(".globl red_kernel\n.p2align 8\n.type red_kernel,@function\nred_kernel:")
    A("s_cmp_ge_u32 s2, 224\ns_cbranch_scc1 L_end_red")
    A("s_load_dwordx2 s[4:5], s[0:1], 0\ns_load_dwordx2 s[6:7], s[0:1], 72\ns_load_dwordx2 s[8:9], s[0:1], 88")
    A("s_mul_hi_u32 s10, s2, 0x24924925")
    A("s_mul_i32 s11, s10, 7\ns_sub_u32 s11, s2, s11")
    A("v_lshlrev_b32 v1, 4, v0\nv_and_b32 v1, 0x3ff, v1")
    A("v_lshrrev_b32 v2, 6, v0\nv_lshlrev_b32 v3, 11, v2\nv_add_u32 v1, v1, v3")
    A("s_waitcnt lgkmcnt(0)")
    A("s_lshl_b32 s12, s2, 17")
    A("s_add_u32 s16, s8, s12\ns_addc_u32 s17, s9, 0\ns_and_b32 s17, s17, 0xffff\ns_mov_b32 s18, 131072\ns_mov_b32 s19, 0x20000")
    A("s_mov_b32 s20, s4\ns_and_b32 s21, s5, 0xffff\ns_mov_b32 s22, %d\ns_mov_b32 s23, 0x20000" % SZ_X)
    A("s_mov_b32 s24, s6\ns_and_b32 s25, s7, 0xffff\ns_mov_b32 s26, %d\ns_mov_b32 s27, 0x20000" % SZ_X)
    for j in range(8):
        for br in range(2):
            A("s_mov_b32 s28, %d" % (j*16384 + br*8192))
            for h in range(2):
                b = 8 + ((j*2 + br)*2 + h)*4
                A("buffer_load_dwordx4 v[%d:%d], v1, s[16:19], s28 offen offset:%d" % (b, b + 3, h*1024))
    A("v_and_b32 v4, 15, v0\ns_lshl_b32 s13, s10, 6\nv_add_u32 v4, s13, v4\nv_mul_u32_u24 v4, 896, v4")
    A("v_bfe_u32 v5, v0, 4, 2\nv_lshlrev_b32 v5, 3, v5\nv_lshlrev_b32 v6, 5, v2\nv_add_u32 v5, v5, v6\ns_lshl_b32 s13, s11, 7\nv_add_u32 v5, s13, v5\nv_add_u32 v4, v4, v5")
    for n in range(4):
        A("s_mov_b32 s%d, %d" % (32 + n, n*16*896))
        A("buffer_load_dwordx2 v[%d:%d], v4, s[20:23], s%d offen" % (140 + 2*n, 141 + 2*n, 32 + n))
    first = True
    for j in range(8):
        A("s_waitcnt vmcnt(%d)" % (4 + (7 - j)*4))
        for br in range(2):
            for h in range(2):
                b = 8 + ((j*2 + br)*2 + h)*4
                for q in range(4):
                    n = 2*h + (q >> 1); r = 2*(q & 1)
                    a0 = 160 + 16*br + 4*n + r
                    if j == 0:
                        A("v_lshlrev_b32 v%d, 16, v%d\nv_and_b32 v%d, 0xffff0000, v%d" % (a0, b + q, a0 + 1, b + q))
                    else:
                        A("v_lshlrev_b32 v200, 16, v%d\nv_and_b32 v201, 0xffff0000, v%d" % (b + q, b + q))
                        A("v_add_f32 v%d, v%d, v200\nv_add_f32 v%d, v%d, v201" % (a0, a0, a0 + 1, a0 + 1))
    A("s_waitcnt vmcnt(0)")
    for n in range(4):
        for r in range(4):
            s_ = 160 + 4*n + r; d_ = 176 + 4*n + r
            xr = 140 + 2*n + (r >> 1)
            if r & 1: A("v_and_b32 v202, 0xffff0000, v%d" % xr)
            else: A("v_lshlrev_b32 v202, 16, v%d" % xr)
            A("v_mul_f32 v200, 0x%08x, v%d" % (0xbfb8aa3b, d_))
            A("v_exp_f32 v200, v200\ns_nop 0\nv_add_f32 v200, 1.0, v200\nv_rcp_f32 v200, v200\ns_nop 0")
            A("v_mul_f32 v200, v200, v%d\nv_fma_f32 v%d, v200, v%d, v202" % (d_, s_, s_))
        A("v_cvt_pk_bf16_f32 v204, v%d, v%d\nv_cvt_pk_bf16_f32 v205, v%d, v%d" % (160 + 4*n, 161 + 4*n, 162 + 4*n, 163 + 4*n))
        A("buffer_store_dwordx2 v[204:205], v4, s[24:27], s%d offen\ns_nop 1" % (32 + n))
    A("s_waitcnt vmcnt(0)")
    A("L_end_red:\ns_endpgm")
    return "\n".join(L) + "\n" + kd("red_kernel", 208, 48, 208)

def build(o):
    log = []
    m = build_main(o)
    seq = schedule(m.p, log=log) if o.get("sched", True) else inorder(m.p)
    check_waits(seq)
    seq, nn = hazards(seq)
    log.append("nops inserted: %d, total instrs %d" % (nn, len(seq)))
    out = []
    two = o.get("stop") is None
    out.append(HDR.rstrip("\n"))
    out.append("; @launch kernel=main_kernel grid=(256,1,1) block=(256,1,1) lds=%d" % LDS_BYTES)
    if two: out.append("; @launch kernel=red_kernel grid=(224,1,1) block=(256,1,1) lds=0")
    out.append('.amdgcn_target "amdgcn-amd-amdhsa--gfx950"\n.text')
    out.append(".globl main_kernel\n.p2align 8\n.type main_kernel,@function\nmain_kernel:")
    out += prologue_text(o)
    out += [i.txt for i in seq]
    out.append("s_waitcnt vmcnt(0) lgkmcnt(0)")
    out.append("L_end_main:\ns_endpgm")
    out.append(kd("main_kernel", 512, 102, 256))
    if two: out.append(reduce_kernel())
    return "\n".join(out) + "\n", log

if __name__ == "__main__":
    import json
    o = json.loads(sys.argv[2]) if len(sys.argv) > 2 else {}
    txt, log = build(o)
    open(sys.argv[1], "w").write(txt)
    print("\n".join(log))
```
